```python
import torch

def _softmax(x, axis=-1):
    return torch.softmax(x, dim=axis)

def _gelu(x):
    return torch.nn.functional.gelu(x, approximate='tanh')

def _silu(x):
    return torch.nn.functional.silu(x)

def _sigmoid(x):
    return torch.sigmoid(x)

def _layernorm(x, axis=-1, eps=1e-05):
    m = x.mean(dim=axis, keepdim=True)
    v = x.var(dim=axis, keepdim=True, unbiased=False)
    return (x - m) / torch.sqrt(v + eps)

def _scatter_add(tgt, idx, src, axis=0):
    return tgt.clone().index_add_(axis, idx, src)

def _segment_sum(src, seg, n):
    out = torch.zeros((n,) + src.shape[1:], dtype=src.dtype)
    return out.index_add_(0, seg, src)

def _pad(x, pw):
    flat = tuple((v for pair in reversed(pw) for v in pair))
    return torch.nn.functional.pad(x, flat)
kernel_name = 'adaLN_cond__compressed_kv_cla__mixer_channel_mlp__prompt'

def setup_inputs():

    _w = lambda a: (lambda t: t.to(torch.bfloat16) if t.is_floating_point() else t)(torch.as_tensor(a))

    def _A_setup():
        B, H, Sq, Sk, D, M = (1, 32, 2048, 2048, 128, 512)
        Dc = 4 * D
        return {'x': _w((lambda *s: torch.randn(*s, dtype=torch.bfloat16) * 0.05)(B, Sq, M)), 'c_kv': _w((lambda *s: torch.randn(*s, dtype=torch.bfloat16) * 0.4)(B, Sk, Dc)), 'w_q': _w((lambda *s: torch.randn(*s, dtype=torch.bfloat16) * 3.2)(M, H, D) * M ** (-0.5)), 'w_uk': _w((lambda *s: torch.randn(*s, dtype=torch.bfloat16) * 3.2)(Dc, H, D) * Dc ** (-0.5)), 'w_uv': _w((lambda *s: torch.randn(*s, dtype=torch.bfloat16) * 0.4)(Dc, H, D) * Dc ** (-0.5)), 'w_o': _w((lambda *s: torch.randn(*s, dtype=torch.bfloat16) * 0.4)(H, D, M) * (H * D) ** (-0.5))}
    _A_in = _A_setup()

    def _B_setup():
        B, S, D, F = (1, 2048, 512, 1376)
        return {'x': _w((lambda *s: torch.randn(*s, dtype=torch.bfloat16) * 0.05)(B, S, D)), 'w1': _w((lambda *s: torch.randn(*s, dtype=torch.bfloat16) * 3.2)(D, F) * D ** (-0.5)), 'b1': _w((lambda *s: torch.randn(*s, dtype=torch.bfloat16) * 0.8)(F)), 'w2': _w((lambda *s: torch.randn(*s, dtype=torch.bfloat16) * 0.05)(F, D) * F ** (-0.5)), 'b2': _w((lambda *s: torch.randn(*s, dtype=torch.bfloat16) * 0.1)(D))}
    _B_in = _B_setup()
    return {'A_x': _A_in['x'], 'A_c_kv': _A_in['c_kv'], 'A_w_q': _A_in['w_q'], 'A_w_uk': _A_in['w_uk'], 'A_w_uv': _A_in['w_uv'], 'A_w_o': _A_in['w_o'], 'B_x': _B_in['x'], 'B_w1': _B_in['w1'], 'B_b1': _B_in['b1'], 'B_w2': _B_in['w2'], 'B_b2': _B_in['b2'], 'c': _w((lambda *s: torch.randn(*s, dtype=torch.bfloat16) * 0.1)(1, 512) * 8.0), 'w_mod': _w((lambda *s: torch.randn(*s, dtype=torch.bfloat16) * 0.1)(512, 6 * 512) * 512 ** (-0.5) * 8.0)}

def reference(A_x, A_c_kv, A_w_q, A_w_uk, A_w_uv, A_w_o, B_x, B_w1, B_b1, B_w2, B_b2, c, w_mod):

    def _A_ref(x, c_kv, w_q, w_uk, w_uv, w_o):
        B, Sq, M = (x.shape[0], x.shape[1], x.shape[2])
        Sk = c_kv.shape[1]
        H, D = (w_q.shape[1], w_q.shape[2])
        q = torch.einsum('bqm,mhd->bhqd', x, w_q)
        k = torch.einsum('bkc,chd->bhkd', c_kv, w_uk)
        v = torch.einsum('bkc,chd->bhkd', c_kv, w_uv)
        scores = torch.einsum('bhqd,bhkd->bhqk', q, k) * D ** (-0.5)
        off = Sk - Sq
        qi = torch.arange(Sq)[:, None]
        kj = torch.arange(Sk)[None, :]
        cmask = kj <= qi + off
        scores = torch.where(cmask[None, None], scores, -1000000000.0)
        p = _softmax(scores, axis=-1)
        ctx = torch.einsum('bhqk,bhkd->bhqd', p, v)
        return torch.einsum('bhqd,hdm->bqm', ctx, w_o)

    def _B_ref(x, w1, b1, w2, b2):
        y = _layernorm(x, axis=-1)
        h = _gelu(torch.einsum('bsd,df->bsf', y, w1) + b1)
        return torch.einsum('bsf,fd->bsd', h, w2) + b2
    x = A_x
    mod = (_silu(c) @ w_mod).reshape(c.shape[0], 6, 1, -1)
    sa, ca, ga, sb, cb, gb = (mod[:, 0].clone(), mod[:, 1].clone(), mod[:, 2].clone(), mod[:, 3].clone(), mod[:, 4].clone(), mod[:, 5].clone())
    h = _layernorm(x, axis=-1) * (1 + ca) + sa
    x = x + ga * _A_ref(h, A_c_kv, A_w_q, A_w_uk, A_w_uv, A_w_o)
    h = _layernorm(x, axis=-1) * (1 + cb) + sb
    x = x + gb * _B_ref(h, B_w1, B_b1, B_w2, B_b2)
    return x
```

```python
import re, sys

REG_RE = re.compile(r'^(-|\|)?(abs\()?([vas])(\d+|\[(\d+):(\d+)\])\)?\|?$')

def regs_of(op):
    op = op.strip()
    if op in ('vcc', 'vcc_lo', 'vcc_hi'): return {('s', 106), ('s', 107)} if op == 'vcc' else {('s', 106 if op == 'vcc_lo' else 107)}
    if op == 'exec': return {('s', 126), ('s', 127)}
    if op in ('exec_lo',): return {('s', 126)}
    if op in ('exec_hi',): return {('s', 127)}
    if op == 'm0': return {('s', 124)}
    m = REG_RE.match(op)
    if not m: return set()
    t = m.group(3)
    if m.group(5) is not None: return {(t, i) for i in range(int(m.group(5)), int(m.group(6)) + 1)}
    return {(t, int(m.group(4)))}

TRANS = ('v_exp_f32', 'v_log_f32', 'v_rcp_f32', 'v_rsq_f32', 'v_sqrt_f32', 'v_sin_f32', 'v_cos_f32')
VCC = {('s', 106), ('s', 107)}
EXEC = {('s', 126), ('s', 127)}
M0 = {('s', 124)}

class Ins:
    __slots__ = ('text', 'op', 'ops', 'mods', 'rd', 'wr', 'kind', 'label', 'target', 'passes', 'A', 'B', 'C', 'D', 'data', 'dpp', 'lds', 'auto', 'wide')
    def __init__(self, text):
        self.text = text; self.auto = False
        t = text.split(';')[0].strip()
        self.label = None; self.target = None; self.rd = set(); self.wr = set(); self.kind = 'other'
        self.passes = 0; self.A = self.B = self.C = self.D = set(); self.data = set(); self.dpp = False; self.lds = False; self.wide = False
        self.op = ''; self.ops = []; self.mods = ''
        if not t or t.startswith('.'):
            self.kind = 'none'; return
        if t.endswith(':'):
            self.kind = 'label'; self.label = t[:-1]; return
        sp = t.split(None, 1); op = sp[0]; self.op = op
        rest = sp[1] if len(sp) > 1 else ''
        parts = [p.strip() for p in rest.split(',')] if rest else []
        mods = ''
        if parts:
            lp = parts[-1].split(None, 1)
            if 'quad_perm' in rest or 'op_sel' in rest or 'neg_' in rest:
                idx = min([rest.find(k) for k in ('quad_perm', 'op_sel', 'neg_lo', 'neg_hi') if k in rest])
                mods = rest[idx:]; parts = [p.strip() for p in rest[:idx].strip().split(',')]
                lp = parts[-1].split(None, 1)
                parts[-1] = lp[0]; mods = (lp[1] + ' ' if len(lp) > 1 else '') + mods
            else:
                parts[-1] = lp[0]; mods = lp[1] if len(lp) > 1 else ''
        self.ops = parts; self.mods = mods
        R = [regs_of(p) for p in parts]
        base = op.replace('_e32', '').replace('_e64', '').replace('_dpp', '')
        if op.startswith('v_mfma'):
            self.kind = 'mfma'; self.D, self.A, self.B, self.C = R[0], R[1], R[2], R[3]
            self.wr = set(R[0]); self.rd = R[1] | R[2] | R[3]
            self.passes = 8 if '32x32' in op else 4
        elif op.startswith('v_'):
            self.kind = 'valu'
            self.dpp = any(k in mods for k in ('quad_perm', 'row_', 'wave_'))
            if base.startswith('v_cmpx'):
                self.wr = R[0] | EXEC; self.rd = set().union(*R[1:])
            elif base.startswith('v_cmp') or base.startswith('v_readfirstlane') or base.startswith('v_readlane'):
                self.wr = R[0]; self.rd = set().union(*R[1:])
            elif base.startswith('v_permlane') and 'swap' in base:
                self.wr = R[0] | R[1]; self.rd = R[0] | R[1]
            elif base in ('v_add_co_u32', 'v_sub_co_u32', 'v_addc_co_u32', 'v_subb_co_u32', 'v_div_scale_f32', 'v_mad_u64_u32'):
                self.wr = R[0] | R[1]; self.rd = set().union(*R[2:])
            elif base.startswith('v_fmac') or base.startswith('v_mac') or base.startswith('v_dot2c') or base.startswith('v_writelane') or base.startswith('v_pk_fmac'):
                self.wr = R[0]; self.rd = set().union(*R)
            elif base == 'v_nop':
                pass
            else:
                self.wr = R[0]; self.rd = set().union(*R[1:]) if len(R) > 1 else set()
                if self.dpp: self.rd |= R[0]
            if base == 'v_div_fmas_f32': self.rd |= VCC
        elif op.startswith('ds_'):
            self.kind = 'ds'
            if op.startswith('ds_read') or op.startswith('ds_swizzle') or op.startswith('ds_bpermute') or op.startswith('ds_permute'):
                self.wr = R[0]; self.rd = set().union(*R[1:])
            else:
                self.rd = set().union(*R)
        elif op.startswith('buffer_') or op.startswith('global_'):
            self.kind = 'vmem'
            toks = mods.split()
            if op in ('buffer_wbl2', 'buffer_inv'):
                pass
            elif 'lds' in toks or '_lds_' in op:
                self.lds = True; self.rd = set().union(*R) | M0
            elif '_load' in op:
                self.wr = R[0]; self.rd = set().union(*R[1:])
            elif 'atomic' in op:
                self.rd = set().union(*R)
                if 'sc0' in toks and op.startswith('buffer_'): self.wr = R[0]
            else:
                self.rd = set().union(*R)
                self.data = R[0] if op.startswith('buffer_') else R[1]
                self.wide = op.endswith('x4') or op.endswith('x3')
        elif op.startswith('s_'):
            if op.startswith('s_load') or op.startswith('s_memtime') or op.startswith('s_memrealtime') or op.startswith('s_buffer_load'):
                self.kind = 'smem'; self.wr = R[0]; self.rd = set().union(*R[1:]) if len(R) > 1 else set()
            elif op.startswith('s_cbranch') or op == 's_branch':
                self.kind = 'branch'; self.target = parts[0]
            elif op == 's_waitcnt': self.kind = 'wait'
            elif op == 's_nop': self.kind = 'nop'
            elif op == 's_endpgm': self.kind = 'end'
            elif op in ('s_barrier', 's_setprio', 's_sleep'): self.kind = 'salu'
            elif op.startswith('s_cmp') or op.startswith('s_bitcmp'):
                self.kind = 'salu'; self.rd = set().union(*R)
            elif 'saveexec' in op:
                self.kind = 'salu'; self.wr = R[0] | EXEC; self.rd = R[1] | EXEC
            else:
                self.kind = 'salu'; self.wr = R[0] if R else set(); self.rd = set().union(*R[1:]) if len(R) > 1 else set()
                if op in ('s_addk_i32', 's_mulk_i32'): self.rd |= R[0]
        else:
            raise ValueError('unknown instruction: ' + text)
    def states(self):
        if self.kind in ('none', 'label'): return 0
        if self.kind == 'nop': return int(self.ops[0], 0) + 1
        return 1
    def waits(self):
        t = self.text.split(';')[0]
        vm = re.search(r'vmcnt\((\d+)\)', t); lg = re.search(r'lgkmcnt\((\d+)\)', t)
        return (int(vm.group(1)) if vm else None, int(lg.group(1)) if lg else None)

def vonly(s): return {r for r in s if r[0] != 's'}
def sonly(s): return {r for r in s if r[0] == 's'}

def need(p, c):
    n = 0
    base = c.op
    if p.kind == 'valu':
        pv = vonly(p.wr); ps = sonly(p.wr)
        if c.kind == 'mfma':
            if pv & c.rd: n = max(n, 2)
            if ps & EXEC: n = max(n, 4)
        if c.kind == 'valu':
            if p.op.replace('_e32', '').replace('_e64', '') in TRANS and pv & (c.rd | c.wr): n = max(n, 1)
            if base.startswith('v_permlane') and pv & c.rd: n = max(n, 2)
            if (base.startswith('v_readlane') or base.startswith('v_readfirstlane')) and pv & c.rd: n = max(n, 1)
            if c.dpp and pv & c.rd: n = max(n, 2)
            if c.dpp and ps & EXEC: n = max(n, 5)
            if ps & EXEC and (base.startswith('v_read') or base.startswith('v_writelane') or base.startswith('v_permlane')): n = max(n, 4)
            crd = set(c.rd)
            if base.startswith('v_cndmask') and len(c.ops) == 3: crd |= VCC
            if ps & crd:
                n = max(n, 2)
                if base.startswith('v_readlane') or base.startswith('v_writelane'): n = max(n, 4)
                if base.startswith('v_div_fmas'): n = max(n, 4)
            if ('op_sel' in p.mods or 'sdwa' in p.op) and pv & (c.rd | c.wr): n = max(n, 1)
        if c.kind == 'vmem' and ps & c.rd: n = max(n, 5)
        if c.kind in ('salu', 'smem') and ps & c.rd: n = max(n, 1)
        if c.kind == 'branch' and (('vcc' in c.op and ps & VCC) or ('exec' in c.op and ps & EXEC)): n = max(n, 5)
    elif p.kind == 'mfma':
        big = p.passes == 8
        if c.kind == 'mfma':
            if p.D & c.C and not (p.D == c.C and p.passes == c.passes): n = max(n, 10 if big else 6)
            if p.D & (c.A | c.B): n = max(n, 12 if big else 8)
            if p.D & c.D and not (p.D == c.C): n = max(n, 10 if big else 6)
        elif c.kind in ('valu', 'ds', 'vmem'):
            if p.D & (c.rd | c.wr): n = max(n, 12 if big else 8)
            if c.kind == 'valu' and p.C & c.wr: n = max(n, 7 if big else 3)
    elif p.kind == 'salu':
        if p.wr & M0 and c.kind == 'vmem' and c.lds: n = max(n, 1)
    elif p.kind == 'vmem' and p.wide:
        if p.data & c.wr: n = max(n, 2 if c.kind in ('valu', 'mfma') else 1)
    return n

class Kern:
    def __init__(self, name):
        self.name = name; self.ins = []; self.nlab = 0
    def __call__(self, text, *a):
        if a: text = text % a
        for l in text.split('\n'):
            l = l.strip()
            if l: self.ins.append(Ins(l))
    def add(self, lst):
        for x in lst: self(x)
    def lab(self, base='L'):
        self.nlab += 1; return '%s_%s%d' % (self.name.replace('_kernel', ''), base, self.nlab)
    def succ(self):
        labs = {x.label: i for i, x in enumerate(self.ins) if x.kind == 'label'}
        S = []
        for i, x in enumerate(self.ins):
            if x.kind == 'end': S.append([])
            elif x.kind == 'branch':
                t = labs[x.target]
                S.append([t] if x.op == 's_branch' else [i + 1, t])
            else: S.append([i + 1] if i + 1 < len(self.ins) else [])
        return S
    def fix_hazards(self, verbose=True):
        total = 0
        while True:
            S = self.succ(); ins = self.ins; fixes = {}
            for i, p in enumerate(ins):
                if p.kind not in ('valu', 'mfma', 'salu', 'vmem'): continue
                if p.kind == 'salu' and not (p.wr & M0): continue
                if p.kind == 'vmem' and not p.wide: continue
                lim = 12 if p.kind == 'mfma' else 5
                stack = [(j, 0) for j in S[i]]; seen = {}
                while stack:
                    j, d = stack.pop()
                    if d >= lim or seen.get(j, 99) <= d: continue
                    seen[j] = d
                    c = ins[j]
                    if c.kind not in ('none', 'label'):
                        n = need(p, c)
                        if n > d: fixes[j] = max(fixes.get(j, 0), n - d)
                    for k2 in S[j]: stack.append((k2, d + c.states()))
            if not fixes: break
            last = -100; new = []
            for j, x in enumerate(ins):
                if j in fixes and j - last > 14:
                    nn = Ins('s_nop %d ; auto' % (fixes[j] - 1)); nn.auto = True
                    new.append(nn); last = j; total += 1
                    if verbose: print('  [%s] auto s_nop %d before: %s' % (self.name, fixes[j] - 1, x.text), file=sys.stderr)
                new.append(x)
            self.ins = new
        return total
    def check_waits(self, maxstates=400000):
        S = self.succ(); ins = self.ins; errs = set()
        seen = set(); stack = [(0, (), ())]
        while stack:
            st = stack.pop()
            if st in seen: continue
            seen.add(st)
            if len(seen) > maxstates: print('check_waits: too many states', file=sys.stderr); break
            i, vm, lg = st; x = ins[i]
            if x.kind == 'wait':
                a, b = x.waits()
                if a is not None and len(vm) > a: vm = vm[len(vm) - a:] if a else ()
                if b is not None:
                    if any(ins[q].kind == 'smem' for q in lg):
                        if b == 0: lg = ()
                    elif len(lg) > b: lg = lg[len(lg) - b:] if b else ()
            elif x.kind not in ('none', 'label'):
                touch = x.rd | x.wr
                for q in vm + lg:
                    if ins[q].wr & touch:
                        if ins[q].kind == 'ds' and x.kind == 'ds' and not (ins[q].wr & x.rd): continue
                        errs.add((i, q))
                if x.kind == 'vmem': vm = (vm + (i,))[-64:]
                elif x.kind in ('ds', 'smem'): lg = (lg + (i,))[-16:]
            while vm and not ins[vm[0]].wr: vm = vm[1:]
            while lg and not ins[lg[0]].wr: lg = lg[1:]
            for j in S[i]: stack.append((j, vm, lg))
        for i, q in sorted(errs): print('  [%s] WAIT ERROR: "%s" touches dest of outstanding "%s"' % (self.name, ins[i].text, ins[q].text), file=sys.stderr)
        return len(errs)
    def maxregs(self):
        mv = ma = ms = -1
        for x in self.ins:
            for t, n in x.rd | x.wr:
                if t == 'v': mv = max(mv, n)
                elif t == 'a': ma = max(ma, n)
                elif n < 106: ms = max(ms, n)
        return mv + 1, ma + 1, ms + 1
    def text(self):
        out = ['.p2align 8', '.globl %s' % self.name, '.type %s,@function' % self.name, '%s:' % self.name]
        for x in self.ins: out.append(x.text if x.kind == 'label' else '    ' + x.text)
        return '\n'.join(out) + '\n'
    def desc(self):
        nv, na, ns = self.maxregs()
        acc = max(4, (nv + 3) // 4 * 4)
        tot = acc + na if na else nv
        return ('.p2align 6\n.amdhsa_kernel %s\n  .amdhsa_next_free_vgpr %d\n  .amdhsa_next_free_sgpr %d\n  .amdhsa_accum_offset %d\n'
                '  .amdhsa_group_segment_fixed_size 0\n  .amdhsa_kernarg_size 128\n  .amdhsa_user_sgpr_count 2\n'
                '  .amdhsa_user_sgpr_kernarg_segment_ptr 1\n  .amdhsa_system_sgpr_workgroup_id_x 1\n'
                '  .amdhsa_float_denorm_mode_32 3\n.end_amdhsa_kernel\n') % (self.name, tot, max(ns, 16), acc)

def interleave(main, fill, start=0, per=None):
    out = []
    n = len(main)
    if fill and isinstance(fill[0], list):
        for i, m in enumerate(main):
            out.append(m)
            if i < len(fill): out += fill[i]
        for g in fill[n:]: out += g
        return out
    k = 0; span = n - start
    for i, m in enumerate(main):
        out.append(m)
        if i >= start:
            tgt = (len(fill) * (i - start + 1) + span - 1) // span
            while k < tgt: out.append(fill[k]); k += 1
    out += fill[k:]
    return out

def autowait(k, start, end=None, slack=190):
    ins = k.ins; end = len(ins) if end is None else end
    out = []; vm = []; lg = []
    pos = 0; lastm = -100
    for x in ins[start:end]:
        t = x.text.strip()
        if t.startswith('.waittag'):
            names = t.split()[1:]
            idx = -1
            for i, (q, _) in enumerate(vm):
                if any(('tag=' + nm + ' ') in (q.text + ' ') for nm in names): idx = i
            if idx >= 0:
                n = min(len(vm) - 1 - idx, 63)
                out.append(Ins('s_waitcnt vmcnt(%d)' % n)); vm = vm[len(vm) - n:] if n else []
            continue
        if x.kind == 'wait':
            a, b = x.waits()
            if a is not None and len(vm) > a: vm = vm[len(vm) - a:] if a else []
            if b is not None and len(lg) > b: lg = lg[len(lg) - b:] if b else []
            out.append(x); continue
        if x.kind in ('none', 'label'):
            out.append(x); continue
        touch = x.rd | x.wr
        if x.kind == 'mfma': pos = max(pos, lastm + 4 * x.passes)
        def needidx(queue):
            idx = -1
            for i, (q, _) in enumerate(queue):
                if q.wr & touch:
                    if q.kind == 'ds' and x.kind == 'ds' and not (q.wr & x.rd): continue
                    idx = i
            return idx
        iv = needidx(vm); il = needidx(lg); w = []
        if iv >= 0:
            n = min(len(vm) - 1 - iv, 63); w.append('vmcnt(%d)' % n); vm = vm[len(vm) - n:] if n else []
        if il >= 0:
            if any(q.kind == 'smem' for q, _ in lg): n = 0
            else:
                while il + 1 < len(lg) and pos - lg[il + 1][1] >= slack: il += 1
                n = min(len(lg) - 1 - il, 15)
            w.append('lgkmcnt(%d)' % n); lg = lg[len(lg) - n:] if n else []
        if w: out.append(Ins('s_waitcnt ' + ' '.join(w)))
        out.append(x)
        if x.kind == 'mfma':
            pos = max(pos, lastm + 4 * x.passes); lastm = pos; pos += 8
        else: pos += 8 if x.op in TRANS else 4
        if x.kind == 'vmem': vm.append((x, pos))
        elif x.kind in ('ds', 'smem'): lg.append((x, pos))
    k.ins = ins[:start] + out + ins[end:]

def steady(body, slack=190):
    t = Kern('tmp'); t.add(body); t('.mark'); t.add(body); t('.mark'); t.add(body)
    autowait(t, 0, slack=slack)
    idx = [i for i, x in enumerate(t.ins) if x.text.strip() == '.mark']
    return [x.text for x in t.ins[idx[1] + 1:]]
```

```python
from asmlib import *
A_X, A_CKV, A_WQ, A_WUK, A_WUV, A_WO, A_BX, A_W1, A_B1, A_W2, A_B2, A_C, A_WMOD, A_OUT, A_DBG, A_WS = [8 * i for i in range(16)]
WS_MOD, SZ_MOD = 0x0, 3072 * 4
WS_HF, SZ_HF = 0x100000, 2 << 20
WS_KF, SZ_KF = 0x1000000, 16 << 20
WS_VF, SZ_VF = 0x2000000, 16 << 20
WS_CTX, SZ_CTX = 0x3000000, 16 << 20
WS_PART, SZ_PART = 0x4000000, 8 << 20
WS_X1, SZ_X1 = 0x4800000, 4 << 20
WS_YF, SZ_YF = 0x5000000, 2 << 20
WS_H2, SZ_H2 = 0x5400000, 64 * 86 * 1024

def srd(k, d, p, size, off=0):
    if off:
        k('s_add_u32 s%d, s%d, 0x%x', d, p, off); k('s_addc_u32 s%d, s%d, 0', d + 1, p + 1)
    else:
        k('s_mov_b32 s%d, s%d', d, p); k('s_mov_b32 s%d, s%d', d + 1, p + 1)
    k('s_mov_b32 s%d, 0x%x', d + 2, size); k('s_mov_b32 s%d, 0x20000', d + 3)

def ldarg(k, d, off): k('s_load_dwordx2 s[%d:%d], s[0:1], %d', d, d + 1, off)
def vr(b, n=4): return 'v[%d:%d]' % (b, b + n - 1)
def ar(b, n=4): return 'a[%d:%d]' % (b, b + n - 1)
def sr(b, n=4): return 's[%d:%d]' % (b, b + n - 1)
DPPM = 'row_mask:0xf bank_mask:0xf'
def mfma(d, a, b, c): return 'v_mfma_f32_32x32x16_bf16 %s, %s, %s, %s' % (d, a, b, c)

def sigma(k, d, s, tmp):
    k('v_and_b32 v%d, 4, v%d', tmp, s); k('v_lshlrev_b32 v%d, 1, v%d', tmp, tmp)
    k('v_and_b32 v%d, 8, v%d', d, s); k('v_lshrrev_b32 v%d, 1, v%d', d, d)
    k('v_or_b32 v%d, v%d, v%d', tmp, tmp, d)
    k('v_and_b32 v%d, 0xfffffff3, v%d', d, s); k('v_or_b32 v%d, v%d, v%d', d, d, tmp)

def red32(k, r, t):
    for m in ('quad_perm:[1,0,3,2]', 'quad_perm:[2,3,0,1]', 'row_half_mirror', 'row_mirror'):
        k('v_add_f32_dpp v%d, v%d, v%d %s %s', r, r, r, m, DPPM)
    k('v_mov_b32 v%d, v%d', t, r)
    k('v_permlane16_swap_b32 v%d, v%d', r, t)
    k('v_add_f32 v%d, v%d, v%d', r, r, t)

def wtr_addr(k, dst, lane, t0, t1, pitch_log2, nct):
    k('v_bfe_u32 v%d, v%d, 2, 2', t0, lane)
    k('v_lshrrev_b32 v%d, 5, v%d', t1, lane)
    k('v_lshl_add_u32 v%d, v%d, 3, v%d', t1, t1, t0)
    k('v_lshlrev_b32 v%d, %d, v%d', dst, pitch_log2, t1)
    k('v_bfe_u32 v%d, v%d, 4, 1', t1, lane)
    k('v_lshl_add_u32 v%d, v%d, 5, v%d', dst, t1, dst)
    k('v_and_b32 v%d, 1, v%d', t1, lane)
    k('v_lshl_add_u32 v%d, v%d, 4, v%d', dst, t1, dst)
    k('v_bfe_u32 v%d, v%d, 1, 1', t1, lane)
    k('v_lshl_add_u32 v%d, v%d, 3, v%d', dst, t1, dst)
    if pitch_log2 == 8: k('v_lshlrev_b32 v%d, 6, v%d', t0, t0)
    elif pitch_log2 == 7:
        k('v_lshrrev_b32 v%d, 1, v%d', t0, t0); k('v_lshlrev_b32 v%d, 6, v%d', t0, t0)
    else: k('v_mov_b32 v%d, 0', t0)
    k('v_or_b32 v%d, v%d, v%d', dst, dst, t0)
    for ct in range(1, nct): k('v_xor_b32 v%d, %d, v%d', dst + ct, ct << 6, dst)

import os
STAMPS = os.environ.get('STAMPS', '')
WS_STAMP = 0x8000000
def stamp(k, i):
    if k.name in STAMPS:
        if i == 0: k('s_memrealtime s[98:99]')
        k('s_memtime s[%d:%d]', 70 + 2 * i, 71 + 2 * i)
def stamp_end(k, n, ws_ptr, wave_s, kidx=0):
    if k.name not in STAMPS: return
    k('s_memrealtime s[68:69]')
    k('s_waitcnt lgkmcnt(0)')
    srd(k, 64, ws_ptr, 1 << 20, WS_STAMP)
    k('s_lshl_b32 s69, s2, 2'); k('s_add_u32 s69, s69, s%d', wave_s); k('s_lshl_b32 s69, s69, 6')
    k('v_mov_b32 v1, 0')
    for i in range(n):
        k('v_mov_b32 v2, s%d', 70 + 2 * i); k('buffer_store_dword v2, v1, s[64:67], s69 offen offset:%d', 4 * i)
    k('v_mov_b32 v2, s98'); k('buffer_store_dword v2, v1, s[64:67], s69 offen offset:56')
    k('v_mov_b32 v2, s68'); k('buffer_store_dword v2, v1, s[64:67], s69 offen offset:60')

import struct
def f2u(x): return struct.unpack('<I', struct.pack('<f', x))[0]
QSCALE_F = 1.4426950408889634 * 128 ** -0.5
QSCALE = f2u(QSCALE_F)
```

```python
from common import *

def ln_rows(k, xs, t, eps_s):
    s = t; r = t + 1; u = t + 2
    k('v_add_f32 v%d, v%d, v%d', s, xs[0], xs[1])
    for x in xs[2:]: k('v_add_f32 v%d, v%d, v%d', s, s, x)
    red32(k, s, u)
    k('v_mul_f32 v%d, 0x3b000000, v%d', s, s)
    for x in xs: k('v_sub_f32 v%d, v%d, v%d', x, x, s)
    k('v_mul_f32 v%d, v%d, v%d', r, xs[0], xs[0])
    for x in xs[1:]: k('v_fmac_f32 v%d, v%d, v%d', r, x, x)
    red32(k, r, u)
    k('v_mov_b32 v%d, s%d', u, eps_s)
    k('v_fmac_f32 v%d, 0x3b000000, v%d', u, r)
    k('v_rsq_f32 v%d, v%d', r, u)
    return r

def unpack(k, src, dst, n):
    for j in range(n):
        k('v_and_b32 v%d, 0xffff0000, v%d', dst + 2 * j + 1, src + j)
        k('v_lshlrev_b32 v%d, 16, v%d', dst + 2 * j, src + j)

def gen_kv():
    k = Kern('kv_kernel'); done = k.lab('done'); loop = k.lab('loop')
    EXP = os.environ.get('EXP', '')
    k('s_cmp_ge_u32 s2, 256'); k('s_cbranch_scc1 %s', done)
    st = len(k.ins)
    stamp(k, 0)
    LANE, XG, WG, XR, WR, SO, T0, T1 = 1, 2, 6, 10, 14, 18, 19, 20
    NV = 13; VB = 48
    WF, XF = 64, 128
    def acc(i): return vr(VB + 16 * i, 16) if i < NV else ar(16 * (i - NV), 16)
    XS = 65536
    k('v_lshrrev_b32 v%d, 6, v0', T0)
    k('v_and_b32 v%d, 63, v0', LANE)
    k('v_readfirstlane_b32 s3, v%d', T0)
    ldarg(k, 4, A_X); ldarg(k, 6, A_CKV); ldarg(k, 12, A_WS)
    k('s_lshr_b32 s14, s3, 1'); k('s_lshl_b32 s14, s14, 3'); k('s_add_u32 s14, s14, %d', A_WUK)
    k('s_load_dwordx2 s[8:9], s[0:1], s14')
    k('s_and_b32 s14, s2, 7'); k('s_lshr_b32 s15, s2, 3')
    k('s_lshr_b32 s16, s15, 3'); k('s_lshl_b32 s14, s14, 2'); k('s_add_u32 s14, s14, s16')
    k('s_and_b32 s15, s15, 7')
    k('s_lshl_b32 s16, s16, 1'); k('s_add_u32 s16, s16, s15')
    if 'rot' not in EXP: k('s_mov_b32 s16, 0')
    k('v_and_b32 v%d, 7, v%d', T0, LANE); k('v_lshrrev_b32 v%d, 4, v%d', T1, LANE); k('v_xor_b32 v%d, v%d, v%d', T0, T0, T1)
    k('v_lshrrev_b32 v%d, 3, v%d', XG, LANE); k('v_lshlrev_b32 v%d, 10, v%d', XG, XG); k('v_lshl_add_u32 v%d, v%d, 4, v%d', XG, T0, XG)
    k('v_xor_b32 v%d, 64, v%d', XG + 1, XG); k('v_add_u32 v%d, %d, v%d', XG + 2, 2 * 7168, XG)
    k('v_add_u32 v%d, %d, v%d', XG + 3, 3 * 7168, XG + 1); k('v_add_u32 v%d, %d, v%d', XG + 1, 7168, XG + 1)
    k('v_and_b32 v%d, 15, v%d', T0, LANE); k('v_lshlrev_b32 v%d, 2, v%d', WG, T1); k('v_xor_b32 v%d, v%d, v%d', T0, T0, WG)
    k('v_lshlrev_b32 v%d, 13, v%d', WG, T1); k('v_lshl_add_u32 v%d, v%d, 4, v%d', WG, T0, WG)
    k('s_and_b32 s19, s3, 1'); k('s_lshl_b32 s19, s19, 17'); k('s_lshl_b32 s52, s14, 8'); k('s_add_u32 s19, s19, s52')
    k('v_add_u32 v%d, s19, v%d', WG, WG)
    for i in range(1, 4): k('v_add_u32 v%d, %d, v%d', WG + i, i * (32768 - 1024), WG)
    k('s_lshl_b32 s53, s15, 18'); k('s_lshl_b32 s54, s3, 16'); k('s_add_u32 s53, s53, s54')
    k('s_lshl_b32 s55, s3, 12')
    k('s_lshl_b32 s18, s3, 13'); k('s_add_u32 s18, s18, %d', XS)
    k('s_lshl_b32 s17, s2, 3'); k('s_lshl_b32 s54, s3, 1'); k('s_add_u32 s17, s17, s54')
    k('v_lshrrev_b32 v%d, 5, v%d', T0, LANE); k('v_add_u32 v26, s17, v%d', T0)
    k('v_and_b32 v27, 31, v%d', LANE)
    k('v_lshlrev_b32 v28, 10, v26'); k('v_lshl_add_u32 v28, v27, 4, v28')
    k('v_lshlrev_b32 v29, 5, v27')
    k('s_waitcnt lgkmcnt(0)')
    srd(k, 24, 6, 2 << 20); srd(k, 28, 8, 4 << 20)
    def load_w():
        return ['s_lshl_b32 s60, s16, 1', 's_add_u32 s60, s60, s56', 's_and_b32 s60, s60, 15', 's_lshl_b32 s60, s60, 18',
                's_cmp_lt_u32 s56, 16', 's_cselect_b32 s60, s60, 0x7fffffff', 's_and_b32 s58, s56, 3', 's_lshl_b32 s58, s58, 14',
                's_add_u32 m0, s58, s55', 's_add_u32 s56, s56, 1'] + \
               ['buffer_load_dwordx4 v%d, s[28:31], s60 offen offset:%d lds' % (WG + i, 1024 * i) for i in range(4)]
    def load_x(hf):
        o = ['s_add_u32 s61, s16, s57', 's_and_b32 s61, s61, 7', 's_lshl_b32 s61, s61, 7', 's_add_u32 s61, s61, s53']
        if hf: o += ['s_add_u32 s61, s61, 0x8000']
        o += ['s_cmp_lt_u32 s57, 8', 's_cselect_b32 s61, s61, 0x7fffffff', 's_add_u32 s62, s59, s18', 's_add_u32 m0, s62, %d' % (4096 * hf)]
        if hf: o += ['s_add_u32 s57, s57, 1', 's_add_u32 s59, s59, 0x8000', 's_cmp_eq_u32 s59, 0x18000', 's_cselect_b32 s59, 0, s59']
        else: o += ['s_nop 0']
        return o + ['buffer_load_dwordx4 v%d, s[24:27], s61 offen offset:%d lds' % (XG + i, 1024 * i) for i in range(4)]
    k('s_mov_b32 s56, 0'); k('s_mov_b32 s57, 0'); k('s_mov_b32 s59, 0')
    k.add(load_w()); k.add(load_x(0)); k.add(load_x(1))
    srd(k, 20, 4, 2 << 20); srd(k, 36, 12, SZ_MOD, WS_MOD)
    LX, LG, LS, LV = 128, 136, 152, 168
    k('buffer_load_dwordx4 %s, v28, s[20:23], 0 offen', vr(LX)); k('buffer_load_dwordx4 %s, v28, s[20:23], 0 offen offset:512', vr(LX + 4))
    for c in range(2):
        for q in range(2):
            k('buffer_load_dwordx4 %s, v29, s[36:39], 0 offen offset:%d', vr(LS + 8 * c + 4 * q), 1024 * c + 16 * q)
            k('buffer_load_dwordx4 %s, v29, s[36:39], 0 offen offset:%d', vr(LG + 8 * c + 4 * q), 2048 + 1024 * c + 16 * q)
    k.add(load_x(0)); k.add(load_w()); k.add(load_x(1)); k.add(load_w())
    srd(k, 40, 12, SZ_HF, WS_HF); srd(k, 44, 12, SZ_KF, WS_KF); srd(k, 48, 12, SZ_VF, WS_VF)
    k('v_and_b32 v%d, 31, v%d', T0, LANE); sigma(k, XR + 1, T0, T1)
    k('v_bfe_u32 v%d, v%d, 1, 3', T0, XR + 1); k('v_lshrrev_b32 v%d, 5, v%d', T1, LANE); k('v_xor_b32 v%d, v%d, v%d', T0, T0, T1)
    k('v_lshlrev_b32 v%d, 7, v%d', XR, XR + 1); k('v_lshl_add_u32 v%d, v%d, 4, v%d', XR, T0, XR); k('v_add_u32 v%d, s18, v%d', XR, XR)
    for t in range(1, 4): k('v_xor_b32 v%d, %d, v%d', XR + t, t << 5, XR)
    wtr_addr(k, WR, LANE, T0, T1, 8, 4)
    k('v_lshlrev_b32 v%d, 4, v%d', SO, LANE)
    k('s_lshl_b32 s63, s14, 19'); k('s_lshl_b32 s54, s15, 16'); k('s_add_u32 s63, s63, s54')
    k('s_lshl_b32 s54, s3, 14'); k('s_add_u32 s63, s63, s54')
    k('v_and_b32 v%d, 31, v26', T0); sigma(k, 30, T0, T1)
    k('v_and_b32 v%d, 1, v27', T0); k('v_lshl_add_u32 v30, v%d, 5, v30', T0); k('v_lshlrev_b32 v30, 4, v30')
    k('v_lshrrev_b32 v%d, 1, v27', T0); k('v_lshl_add_u32 v30, v%d, 10, v30', T0)
    k('v_lshrrev_b32 v%d, 5, v26', T0); k('v_lshl_add_u32 v30, v%d, 15, v30', T0)
    for i in list(range(VB, 128)) + list(range(192, 256)): k('v_mov_b32 v%d, 0', i)
    for i in range(48): k('v_accvgpr_write_b32 a%d, 0', i)
    k('s_mov_b32 s54, 0x3727c5ac')
    unpack(k, LX, LV, 8)
    r = ln_rows(k, list(range(LV, LV + 16)), 184, 54)
    k('v_mul_f32 v%d, 0x%08x, v%d', r, QSCALE, r)
    for j in range(16): k('v_mul_f32 v%d, v%d, v%d', LG + j, LG + j, r)
    for j in range(16): k('v_mul_f32 v%d, 0x%08x, v%d', LS + j, QSCALE, LS + j)
    for j in range(16): k('v_fma_f32 v%d, v%d, v%d, v%d', LV + j, LV + j, LG + j, LS + j)
    for j in range(8): k('v_cvt_pk_bf16_f32 v%d, v%d, v%d', 32 + j, LV + 2 * j, LV + 2 * j + 1)
    k('s_movk_i32 s54, 0x4000')
    for i in range(128, 192): k('v_mov_b32 v%d, 0', i)
    stamp(k, 1)
    k('s_barrier')
    k('buffer_store_dwordx4 %s, v30, s[40:43], 0 offen', vr(32)); k('buffer_store_dwordx4 %s, v30, s[40:43], s54 offen', vr(36))
    stamp(k, 2)
    PD = 5
    def wread(u):
        u %= 32; t = u // 8; j = u % 8; f = WF + 4 * (u % 16)
        off = (t // 2) * 16384 + (j // 4) * 8192 + (t % 2) * 4096
        return ['ds_read_b64_tr_b16 %s, v%d offset:%d' % (ar(f, 2), WR + j % 4, off), 'ds_read_b64_tr_b16 %s, v%d offset:%d' % (ar(f + 2, 2), WR + j % 4, off + 1024)]
    def xread(t, tt): return 'ds_read_b128 %s, v%d offset:%d' % (ar(XF + 8 * (t % 2) + 4 * tt), XR + t % 4, 4096 * tt)
    k(xread(0, 0)); k(xread(0, 1))
    for u in range(PD): k.add(wread(u))
    k('s_mov_b32 s64, 0'); k('s_mov_b32 s65, 0x8000'); k('s_mov_b32 s66, 0xffff0000'); k('s_waitcnt lgkmcnt(0)')
    autowait(k, st)
    body = []; pend = []
    for u in range(32):
        t = u // 8; j = u % 8
        if u % 16 == 0: pend += load_x(u // 16)
        if u == 20:
            pend += ['v_add_u32 v%d, s65, v%d' % (XR, XR)]
        if u % 16 == 16 - PD:
            body += pend; pend = []
            body += ['s_waitcnt vmcnt(12)', 's_barrier']
            if u == 32 - PD: body += ['v_xor_b32 v%d, 0x8000, v%d' % (WR + i, WR + i) for i in range(4)]
            pend += load_w()
            if u == 32 - PD:
                pend += ['v_add_u32 v%d, s65, v%d' % (XR + i, XR + i) for i in range(1, 4)]
                pend += ['s_add_u32 s64, s64, 1', 's_cmp_eq_u32 s59, 0x8000', 's_cselect_b32 s65, s66, 0x8000']
        f = WF + 4 * (u % 16)
        for tt in range(2):
            a = acc(2 * j + tt); x = ar(XF + 8 * (t % 2) + 4 * tt)
            body.append(mfma(a, ar(f), x, a) if j < 4 else mfma(a, x, ar(f), a))
            body.append(wread(u + PD)[tt])
            if j == 4: body.append(xread(t + 1, tt))
            for _ in range(3):
                if pend: body.append(pend.pop(0))
    body += pend
    k('%s:', loop)
    k.add(steady(body))
    k('s_cmp_lt_u32 s64, 8'); k('s_cbranch_scc1 %s', loop)
    stamp(k, 3)
    st2 = len(k.ins)
    k('s_waitcnt lgkmcnt(0)')
    order = list(range(16))
    for i in order:
        j, tt = i // 2, i % 2
        if i < NV: a = VB + 16 * i
        else:
            a = 32
            for q in range(16): k('v_accvgpr_read_b32 v%d, a%d', a + q, 16 * (i - NV) + q)
        for q in range(8): k('v_cvt_pk_bf16_f32 v%d, v%d, v%d', a + q, a + 2 * q, a + 2 * q + 1)
        for s2 in range(2):
            idx = (tt * 8 + 2 * j + s2) if j < 4 else ((2 * tt + s2) * 4 + j - 4)
            k('s_add_u32 s54, s63, %d', idx * 1024)
            if 'nost' not in EXP: k('buffer_store_dwordx4 %s, v%d, %s, s54 offen %s', vr(a + 4 * s2), SO, sr(44 if j < 4 else 48), os.environ.get('STF', ''))
    stamp(k, 4)
    if k.name in STAMPS: k('s_waitcnt vmcnt(0)')
    stamp(k, 5)
    stamp_end(k, 6, 12, 3)
    k('%s:', done); k('s_endpgm')
    return k, 256, 256, 163840
```

```python
from common import *

def gen_mod():
    k = Kern('mod_kernel'); done = k.lab('done')
    k('s_cmp_ge_u32 s2, 192'); k('s_cbranch_scc1 %s', done)
    ldarg(k, 4, A_C); ldarg(k, 6, A_WMOD); ldarg(k, 8, A_WS)
    st = len(k.ins)
    k('v_lshrrev_b32 v1, 1, v0')
    k('v_and_b32 v2, 1, v0')
    k('v_mul_u32_u24 v3, 6144, v1'); k('v_lshl_add_u32 v3, v2, 4, v3')
    k('v_lshlrev_b32 v4, 1, v1')
    k('s_waitcnt lgkmcnt(0)')
    srd(k, 12, 4, 1024); srd(k, 16, 6, 512 * 6144); srd(k, 20, 8, SZ_MOD, WS_MOD)
    k('s_lshl_b32 s24, s2, 5')
    for i in range(4):
        k('buffer_load_ushort v%d, v4, s[12:15], 0 offen offset:%d', 8 + i, 256 * i)
    for i in range(4):
        k('buffer_load_dwordx4 %s, v3, s[16:19], s24 offen', vr(16 + 4 * i))
        if i < 3: k('s_add_u32 s24, s24, %d', 128 * 6144)
    for i in range(4):
        c = 8 + i; t = 12 + i
        k('v_lshlrev_b32 v%d, 16, v%d', c, c)
        k('v_mul_f32 v%d, 0xbfb8aa3b, v%d', t, c)
        k('v_exp_f32 v%d, v%d', t, t)
        k('v_add_f32 v%d, 1.0, v%d', t, t)
        k('v_rcp_f32 v%d, v%d', t, t)
        k('v_mul_f32 v%d, v%d, v%d', c, c, t)
        k('v_cvt_pk_bf16_f32 v%d, v%d, v%d', c, c, c)
        k('v_lshlrev_b32 v%d, 16, v%d', c, c)
    A = 32
    for i in range(4):
        for j in range(4):
            w = 16 + 4 * i + j
            k('v_lshlrev_b32 v5, 16, v%d', w); k('v_and_b32 v6, 0xffff0000, v%d', w)
            if i == 0:
                k('v_mul_f32 v%d, v5, v%d', A + 2 * j, 8); k('v_mul_f32 v%d, v6, v%d', A + 2 * j + 1, 8)
            else:
                k('v_fmac_f32 v%d, v5, v%d', A + 2 * j, 8 + i); k('v_fmac_f32 v%d, v6, v%d', A + 2 * j + 1, 8 + i)
    for m in ('quad_perm:[2,3,0,1]', 'row_ror:4', 'row_ror:8'):
        for j in range(8): k('v_add_f32_dpp v%d, v%d, v%d %s %s', A + j, A + j, A + j, m, DPPM)
    k('v_lshrrev_b32 v5, 4, v0'); k('v_lshlrev_b32 v5, 6, v5'); k('v_lshl_add_u32 v5, v2, 5, v5')
    k('v_and_b32 v6, 15, v0'); k('v_cmp_gt_u32 vcc, 2, v6'); k('s_and_saveexec_b64 s[26:27], vcc')
    k('ds_write_b128 v5, %s', vr(A)); k('ds_write_b128 v5, %s offset:16', vr(A + 4))
    k('s_mov_b64 exec, s[26:27]')
    k('s_waitcnt lgkmcnt(0)'); k('s_barrier')
    k('v_lshlrev_b32 v5, 2, v6')
    for i in range(16): k('ds_read_b32 v%d, v5 offset:%d', 40 + i, 64 * i)
    k('s_waitcnt lgkmcnt(0)')
    for i in range(1, 16): k('v_add_f32 v40, v40, v%d', 40 + i)
    k('v_cvt_pk_bf16_f32 v40, v40, v40'); k('v_lshlrev_b32 v40, 16, v40')
    k('s_lshr_b32 s24, s2, 5'); k('s_cmp_eq_u32 s24, 1'); k('s_cselect_b32 s25, 1.0, 0')
    k('s_cmp_eq_u32 s24, 4'); k('s_cselect_b32 s25, 1.0, s25')
    k('v_add_f32 v40, s25, v40'); k('v_cvt_pk_bf16_f32 v40, v40, v40'); k('v_lshlrev_b32 v40, 16, v40')
    k('s_lshl_b32 s24, s2, 6')
    k('v_cmp_gt_u32 vcc, 16, v0'); k('s_and_saveexec_b64 s[26:27], vcc'); k('s_cbranch_execz %s', done)
    autowait(k, st)
    k('buffer_store_dword v40, v5, s[20:23], s24 offen')
    k('%s:', done); k('s_endpgm')
    return k, 192, 256, 1024
```

```python
import sys, importlib
sys.path.insert(0, 'gen')
from common import *
NAME = 'adaLN_cond__compressed_kv_cla__mixer_channel_mlp__prompt'
def build(gens, path):
    ks = [g() for g in gens]
    hdr = []
    for k, g, b, l in ks: hdr.append('; @launch kernel=%s grid=(%d,1,1) block=(%d,1,1) lds=%d' % (k.name, g, b, l))
    out = '\n'.join(hdr) + '\n; generated by gen/gen.py (hand-written generator scripts)\n.amdgcn_target "amdgcn-amd-amdhsa--gfx950"\n.text\n'
    bad = 0
    for k, g, b, l in ks:
        k.fix_hazards(verbose='-v' in sys.argv); bad += k.check_waits()
        out += k.text()
        print('%s: %d instrs, regs v/a/s %s' % (k.name, len(k.ins), k.maxregs()), file=sys.stderr)
    out += '.section .rodata,"a"\n'
    for k, g, b, l in ks: out += k.desc()
    open(path, 'w').write(out)
    if bad: raise SystemExit('wait errors')
if __name__ == '__main__':
    from k_mod import gen_mod
    from k_kv import gen_kv
    gens = [gen_mod, gen_kv]
    for m, f in (('k_att', 'gen_att'), ('k_tail', 'gen_oproj'), ('k_tail', 'gen_ln2'), ('k_tail', 'gen_mlp1'), ('k_tail', 'gen_mlp2')):
        try: mod = importlib.import_module(m)
        except ModuleNotFoundError: continue
        if hasattr(mod, f): gens.append(getattr(mod, f))
    build(gens, os.environ.get('OUT', 'cdna_kernels/%s.s' % NAME))
```
